```python
import torch

def _softmax(x, axis=-1):
    return torch.softmax(x, dim=axis)
def _gelu(x):
    return torch.nn.functional.gelu(x, approximate="tanh")
def _silu(x):
    return torch.nn.functional.silu(x)
def _sigmoid(x):
    return torch.sigmoid(x)
def _layernorm(x, axis=-1, eps=1e-5):
    m = x.mean(dim=axis, keepdim=True)
    v = x.var(dim=axis, keepdim=True, unbiased=False)
    return (x - m) / torch.sqrt(v + eps)
def _scatter_add(tgt, idx, src, axis=0):
    return tgt.clone().index_add_(axis, idx, src)
def _segment_sum(src, seg, n):
    out = torch.zeros((n,) + src.shape[1:], dtype=src.dtype)
    return out.index_add_(0, seg, src)
def _pad(x, pw):
    flat = tuple(v for pair in reversed(pw) for v in pair)
    return torch.nn.functional.pad(x, flat)

kernel_name = 'interleave_layers__ssm_conv_h3__glu_gated_geglu__prompt'

def setup_inputs():

    _w = (lambda a: (lambda t: t.to(torch.bfloat16) if t.is_floating_point() else t)(torch.as_tensor(a)))
    def _A_setup():
        B, S, D = 1, 2048, 1024
        ks = 4
        return {
            "q": _w((lambda *s: torch.randn(*s, dtype=torch.bfloat16) * 0.05)(B, S, D)),
            "k": _w((lambda *s: torch.randn(*s, dtype=torch.bfloat16) * 0.2)(B, S, D)),
            "v": _w((lambda *s: torch.randn(*s, dtype=torch.bfloat16) * 0.2)(B, S, D)),
            "shift_k": _w((lambda *s: torch.randn(*s, dtype=torch.bfloat16) * 0.2)(D, ks) * 0.5),
            "ssm_k": _w((lambda *s: torch.randn(*s, dtype=torch.bfloat16) * 0.4)(D, S) * (1.0 / S ** 0.5)),
            "ssm_D": _w((lambda *s: torch.randn(*s, dtype=torch.bfloat16) * 0.2)(D)),
        }
    _A_in = _A_setup()

    def _B_setup():
        B, S, Dm, Df = 1, 2048, 1024, 3584
        return {
            "x": _w((lambda *s: torch.randn(*s, dtype=torch.bfloat16) * 0.05)(B, S, Dm)),
            "w_gate": _w((lambda *s: torch.randn(*s, dtype=torch.bfloat16) * 0.4)(Dm, Df) * (Dm ** -0.5)),
            "w_up": _w((lambda *s: torch.randn(*s, dtype=torch.bfloat16) * 0.4)(Dm, Df) * (Dm ** -0.5)),
            "w_down": _w((lambda *s: torch.randn(*s, dtype=torch.bfloat16) * 0.4)(Df, Dm) * (Df ** -0.5)),
        }
    _B_in = _B_setup()

    return {
        "A_q": _A_in["q"],
        "A_k": _A_in["k"],
        "A_v": _A_in["v"],
        "A_shift_k": _A_in["shift_k"],
        "A_ssm_k": _A_in["ssm_k"],
        "A_ssm_D": _A_in["ssm_D"],
        "B_x": _B_in["x"],
        "B_w_gate": _B_in["w_gate"],
        "B_w_up": _B_in["w_up"],
        "B_w_down": _B_in["w_down"],
    }

def reference(A_q, A_k, A_v, A_shift_k, A_ssm_k, A_ssm_D, B_x, B_w_gate, B_w_up, B_w_down):
    def _A_ref(q, k, v, shift_k, ssm_k, ssm_D):
        B, S, D = q.shape
        ks = shift_k.shape[-1]
        k_pad = _pad(k, ((0, 0), (ks - 1, 0), (0, 0)))
        k_shift = torch.zeros_like(k)
        for t in range(ks):
            k_shift = k_shift + k_pad[:, t:t + S, :] * shift_k[:, ks - 1 - t][None, None, :]
        kv = k_shift * v
        L = 2 * S
        kv_pad = _pad(kv, ((0, 0), (0, S), (0, 0)))
        kf_pad = _pad(ssm_k, ((0, 0), (0, S)))
        kv_f = (lambda x, axes=(-2,-1): torch.fft.rfft2(x.float(), dim=axes))(kv_pad[:, None, :, :], axes=(1, 2))
        kf_f = (lambda x, axes=(-2,-1): torch.fft.rfft2(x.float(), dim=axes))(kf_pad[:, None, :], axes=(1, 2))
        kf_f = (lambda x, *d: x.permute(*d))(kf_f, 1, 2, 0)
        y_f = kv_f * kf_f[None, :, :, :]
        y = (lambda x, s, axes=(-2,-1): torch.fft.irfft2(x, s=s, dim=axes).to(torch.bfloat16))(y_f, (1, L), axes=(1, 2))[:, 0, :S, :]
        y = y + kv * ssm_D[None, None, :]
        return q * y

    def _B_ref(x, w_gate, w_up, w_down):
        g = torch.einsum("bsd,df->bsf", x, w_gate)
        u = torch.einsum("bsd,df->bsf", x, w_up)
        h = _gelu(g) * u
        return torch.einsum("bsf,fd->bsd", h, w_down)

    x = A_q
    x = x + _A_ref(_layernorm(x, axis=-1), A_k, A_v, A_shift_k, A_ssm_k, A_ssm_D)
    x = x + _B_ref(_layernorm(x, axis=-1), B_w_gate, B_w_up, B_w_down)
    x = x + _A_ref(_layernorm(x, axis=-1), A_k, A_v, A_shift_k, A_ssm_k, A_ssm_D)
    x = x + _B_ref(_layernorm(x, axis=-1), B_w_gate, B_w_up, B_w_down)
    return x
```

```python
class Asm:
    def __init__(self):
        self.lines = []
    def __call__(self, s=""):
        self.lines.append("    " + s if s and not s.endswith(":") else s)
    def label(self, name):
        self.lines.append(name + ":")
    def comment(self, s):
        self.lines.append("    ; " + s)
    def raw(self, s):
        self.lines.append(s)
    def text(self):
        return "\n".join(self.lines) + "\n"

def vr(lo, n=1, p="v"):
    return f"{p}{lo}" if n == 1 else f"{p}[{lo}:{lo+n-1}]"

def ar(lo, n=1):
    return vr(lo, n, "a")

def sr(lo, n=1):
    return vr(lo, n, "s")

def kernel_head(a, name):
    a.raw(".text")
    a.raw(f".globl {name}")
    a.raw(".p2align 8")
    a.raw(f".type {name},@function")
    a.label(name)

def kernel_desc(a, name, nvgpr, accum_offset, nsgpr=96):
    a.raw('.section .rodata,"a"')
    a.raw(".p2align 6")
    a.raw(f".amdhsa_kernel {name}")
    a.raw(f"  .amdhsa_next_free_vgpr {nvgpr}")
    a.raw(f"  .amdhsa_next_free_sgpr {nsgpr}")
    a.raw(f"  .amdhsa_accum_offset {accum_offset}")
    a.raw("  .amdhsa_group_segment_fixed_size 0")
    a.raw("  .amdhsa_kernarg_size 104")
    a.raw("  .amdhsa_user_sgpr_count 2")
    a.raw("  .amdhsa_user_sgpr_kernarg_segment_ptr 1")
    a.raw("  .amdhsa_system_sgpr_workgroup_id_x 1")
    a.raw(".end_amdhsa_kernel")

def interleave(mfmas, fillers):
    out = list(fillers.get(-1, []))
    for i, m in enumerate(mfmas):
        out.append(m)
        out.extend(fillers.get(i, []))
    return out

import struct
def f32bits(x):
    return struct.unpack("<I", struct.pack("<f", x))[0]
```

```python
from asmlib import *
from g1 import *

KS_P, UR0, UR_P = 4160, 16640, 4608
CONV_LDS = UR0 + 4*UR_P

def emit_conv(a, name="conv_kernel", stamps=False):
    S_K, S_V, S_S, S_Y = 4, 8, 12, 20
    kernel_head(a, name)
    a("s_cmp_ge_u32 s2, 256")
    a(f"s_cbranch_scc1 {name}_end")
    if stamps: a("s_memtime s[40:41]"); a("s_memrealtime s[48:49]")
    a(f"s_load_dwordx4 s[60:63], s[0:1], {K_K}")
    a(f"s_load_dwordx4 s[64:67], s[0:1], {K_SHIFT}")
    a(f"s_load_dwordx2 s[68:69], s[0:1], {K_SSMD}")
    a(f"s_load_dwordx2 s[16:17], s[0:1], {K_WS}")
    a("s_and_b32 s18, s2, 7")
    a("s_lshl_b32 s18, s18, 5")
    a("s_lshr_b32 s19, s2, 3")
    a("s_add_u32 s18, s18, s19")
    a("v_lshrrev_b32 v2, 6, v0")
    a("v_and_b32 v1, 63, v0")
    a("v_readfirstlane_b32 s3, v2")
    a("s_lshl_b32 s19, s18, 3")
    a("v_lshlrev_b32 v3, 14, v0")
    a("v_add_u32 v3, s19, v3")
    a("v_subrev_u32 v4, 6144, v3")
    a("v_subrev_u32 v5, 2048, v3")
    a("s_movk_i32 s24, 4096")
    a("s_movk_i32 s25, 8192")
    a("s_movk_i32 s26, 12288")
    a("s_mov_b32 s27, 0xffff0000")
    a("s_waitcnt lgkmcnt(0)")
    for s, p in ((S_K, 60), (S_V, 62), (S_S, 66)):
        a(f"s_mov_b32 s{s}, s{p}")
        a(f"s_mov_b32 s{s+1}, s{p+1}")
        a(f"s_mov_b32 s{s+2}, {4*MB}")
        a(f"s_mov_b32 s{s+3}, 0x20000")
    a("s_lshl_b32 s19, s18, 5")
    a("s_add_u32 s64, s64, s19")
    a("s_addc_u32 s65, s65, 0")
    a("s_load_dwordx8 s[72:79], s[64:65], 0")
    a("s_lshl_b32 s19, s18, 3")
    a("s_add_u32 s68, s68, s19")
    a("s_addc_u32 s69, s69, 0")
    a("s_load_dwordx2 s[70:71], s[68:69], 0")
    KR, VR = 16, 40
    a(f"buffer_load_dwordx2 {vr(KR,2)}, v4, {sr(S_K,4)}, 0 offen")
    a(f"buffer_load_dwordx2 {vr(KR+2,2)}, v4, {sr(S_K,4)}, 0 offen offset:2048")
    a(f"buffer_load_dwordx2 {vr(KR+4,2)}, v5, {sr(S_K,4)}, 0 offen")
    so = ["0", "s24", "s25", "s26"]
    for j in range(8):
        a(f"buffer_load_dwordx2 {vr(KR+6+2*j,2)}, v3, {sr(S_K,4)}, {so[j//2]} offen offset:{(j%2)*2048}")
    for j in range(8):
        a(f"buffer_load_dwordx2 {vr(VR+2*j,2)}, v3, {sr(S_V,4)}, {so[j//2]} offen offset:{(j%2)*2048}")
    a("s_lshl_b32 s19, s18, 2")
    a("s_add_u32 s19, s19, s3")
    a("s_lshl_b32 s19, s19, 12")
    a("v_lshlrev_b32 v6, 4, v1")
    a(f"s_mul_i32 s28, s3, {KS_P}")
    a("s_add_u32 m0, s28, 32")
    a("s_nop 0")
    for i in range(4):
        a(f"buffer_load_dwordx4 v6, {sr(S_S,4)}, s19 offen offset:{i*1024} lds")
    a("v_bfe_u32 v7, v0, 5, 2")
    a("v_and_b32 v8, 31, v0")
    a(f"s_movk_i32 s29, {UR_P}")
    a("v_mul_u32_u24 v9, s29, v7")
    a("v_lshl_add_u32 v9, v8, 4, v9")
    a(f"v_add_u32 v9, {UR0+4096}, v9")
    a(f"s_movk_i32 s29, {KS_P}")
    a("v_mul_u32_u24 v10, s29, v7")
    a("v_lshl_add_u32 v10, v8, 4, v10")
    a("v_subrev_u32 v10, 480, v10")
    a("v_cmp_gt_u32 vcc, 30, v8")
    for j in range(4): a(f"v_mov_b32 v{12+j}, 0")
    a("v_cndmask_b32 v9, v10, v9, vcc")
    a("ds_write_b128 v9, v[12:15]")
    a(f"s_add_u32 s{S_Y}, s16, {WS_Y}")
    a(f"s_addc_u32 s{S_Y+1}, s17, 0")
    a(f"s_mov_b32 s{S_Y+2}, {4*MB}")
    a(f"s_mov_b32 s{S_Y+3}, 0x20000")
    a("s_waitcnt lgkmcnt(0)")
    for p in range(2):
        for i in range(4):
            for h in range(2):
                src = 72 + (2*p + h)*2 + i//2
                dst = 80 + (p*4 + i)*2 + h
                a(f"s_lshl_b32 s{dst}, s{src}, 16" if i % 2 == 0 else f"s_and_b32 s{dst}, s{src}, s27")
    a("s_lshr_b32 s29, s3, 1")
    a("s_cmp_eq_u32 s29, 1")
    a("s_cselect_b32 s30, s71, s70")
    a("s_and_b32 s29, s3, 1")
    a("s_lshl_b32 s31, s30, 16")
    a("s_and_b32 s30, s30, s27")
    a("s_cmp_eq_u32 s29, 1")
    a("s_cselect_b32 s30, s30, s31")
    KF, U, VF = 64, 112, 56
    a("s_waitcnt vmcnt(12)")
    for j in range(11):
        for p in range(2):
            a(f"v_lshlrev_b32 v{KF+4*j+2*p}, 16, v{KR+2*j+p}")
            a(f"v_and_b32 v{KF+4*j+2*p+1}, s27, v{KR+2*j+p}")
    for j in range(8):
        for p in range(2):
            a(f"v_pk_mul_f32 {vr(U+4*j+2*p,2)}, {vr(KF+4*j+2*p,2)}, {sr(80+(p*4+3)*2,2)}")
    for i in (2, 1, 0):
        for j in range(8):
            for p in range(2):
                a(f"v_pk_fma_f32 {vr(U+4*j+2*p,2)}, {vr(KF+4*(j+3-i)+2*p,2)}, {sr(80+(p*4+i)*2,2)}, {vr(U+4*j+2*p,2)}")
    a("s_waitcnt vmcnt(4)")
    for j in range(8):
        for p in range(2):
            a(f"v_lshlrev_b32 v{VF+2*p}, 16, v{VR+2*j+p}")
            a(f"v_and_b32 v{VF+2*p+1}, s27, v{VR+2*j+p}")
        for p in range(2):
            a(f"v_pk_mul_f32 {vr(U+4*j+2*p,2)}, {vr(U+4*j+2*p,2)}, {vr(VF+2*p,2)}")
    a("v_lshlrev_b32 v7, 4, v0")
    a(f"v_sub_u32 v7, {UR0+4080}, v7")
    for ch in range(4):
        for p in range(4):
            a(f"v_cvt_pk_bf16_f32 v{16+4*ch+p}, v{U+4*(7-2*p)+ch}, v{U+4*(6-2*p)+ch}")
    for ch in range(4):
        a(f"ds_write_b128 v7, {vr(16+4*ch,4)} offset:{ch*UR_P}")
    a("v_and_b32 v8, 15, v1")
    a("v_lshrrev_b32 v9, 4, v1")
    a("v_lshlrev_b32 v10, 4, v9")
    a("v_lshl_add_u32 v11, v8, 1, v10")
    a("s_add_u32 s29, s28, 2")
    a("v_add_u32 v11, s29, v11")
    a(f"s_mul_i32 s29, s3, {UR_P}")
    a(f"s_add_u32 s29, s29, {UR0+480}")
    a("v_lshlrev_b32 v12, 5, v8")
    a("v_sub_u32 v12, v10, v12")
    a("v_add_u32 v12, s29, v12")
    ACC, OP = 16, 48
    for r in range(32): a(f"v_mov_b32 v{180+r}, 0")
    ACC = 180
    a("s_waitcnt vmcnt(0) lgkmcnt(0)")
    a("s_barrier")
    if stamps: a("s_memtime s[42:43]"); a("s_memrealtime s[50:51]"); a("s_waitcnt lgkmcnt(0)")
    def A(r, i): return OP + (r % 2)*64 + 4*i
    def B(r, l): return OP + (r % 2)*64 + 32 + 4*l
    def reads(r):
        o = []
        for i in range(8):
            o.append(f"ds_read_b128 {vr(A(r,i),4)}, v11 offset:{64*r+512*i}")
            o.append(f"ds_read_b128 {vr(B(r,i),4)}, v12 offset:{64*r+512*(7-i)}")
        return o
    for l in reads(0): a(l)
    for r in range(8):
        mf = [f"v_mfma_f32_16x16x32_bf16 {vr(ACC+4*T,4)}, {vr(A(r,i),4)}, {vr(B(r,T-i),4)}, {vr(ACC+4*T,4)}"
              for T in range(8) for i in range(T+1)]
        fill = {-1: ["s_waitcnt lgkmcnt(0)"]}
        if r < 7:
            for j, l in enumerate(reads(r+1)): fill[2*j] = [l]
        for l in interleave(mf, fill): a(l)
    if stamps: a("s_memtime s[44:45]"); a("s_memrealtime s[52:53]")
    a("v_lshlrev_b32 v13, 5, v8")
    a("v_lshl_add_u32 v13, v9, 3, v13")
    a(f"s_add_u32 s31, s29, {4088-3584-480}")
    a("v_sub_u32 v14, s31, v13")
    for T in range(8):
        a(f"ds_read_b64 {vr(48+2*T,2)}, v14 offset:{512*(7-T)}")
    a("s_lshl_b32 s31, s3, 12")
    a("v_add_u32 v13, s31, v13")
    a("s_mov_b32 s31, s30")
    a("s_waitcnt lgkmcnt(0)")
    a("s_barrier")
    for T in range(8):
        c, u, t = ACC + 4*T, 48 + 2*T, 64 + 4*T
        a(f"v_and_b32 v{t}, s27, v{u+1}")
        a(f"v_lshlrev_b32 v{t+1}, 16, v{u+1}")
        a(f"v_and_b32 v{t+2}, s27, v{u}")
        a(f"v_lshlrev_b32 v{t+3}, 16, v{u}")
        a(f"v_pk_mul_f32 {vr(t,2)}, {vr(t,2)}, s[30:31]")
        a(f"v_pk_mul_f32 {vr(t+2,2)}, {vr(t+2,2)}, s[30:31]")
        for x in (t, c):
            a(f"v_cvt_pk_bf16_f32 v{x}, v{x}, v{x+1}")
            a(f"v_cvt_pk_bf16_f32 v{x+2}, v{x+2}, v{x+3}")
            a(f"v_and_b32 v{x+1}, s27, v{x}")
            a(f"v_lshlrev_b32 v{x}, 16, v{x}")
            a(f"v_and_b32 v{x+3}, s27, v{x+2}")
            a(f"v_lshlrev_b32 v{x+2}, 16, v{x+2}")
        a(f"v_pk_add_f32 {vr(c,2)}, {vr(c,2)}, {vr(t,2)}")
        a(f"v_pk_add_f32 {vr(c+2,2)}, {vr(c+2,2)}, {vr(t+2,2)}")
        a(f"v_cvt_pk_bf16_f32 v{t}, v{c}, v{c+1}")
        a(f"v_cvt_pk_bf16_f32 v{t+1}, v{c+2}, v{c+3}")
        a(f"ds_write_b64 v13, {vr(t,2)} offset:{512*T}")
    a("v_lshlrev_b32 v13, 2, v0")
    a("v_lshlrev_b32 v14, 4, v0")
    a("s_lshl_b32 s28, s18, 14")
    a("v_add_u32 v14, s28, v14")
    a("s_mov_b32 s32, 0x05040100")
    a("s_mov_b32 s33, 0x07060302")
    a("s_waitcnt lgkmcnt(0)")
    a("s_barrier")
    for j in range(4):
        for ch in range(4):
            a(f"ds_read_b32 v{16+4*j+ch}, v13 offset:{ch*4096+j*1024}")
    for j in range(4):
        a(f"s_waitcnt lgkmcnt({12-4*j})")
        s, d = 16 + 4*j, 32 + 4*j
        a(f"v_perm_b32 v{d}, v{s+1}, v{s}, s32")
        a(f"v_perm_b32 v{d+1}, v{s+3}, v{s+2}, s32")
        a(f"v_perm_b32 v{d+2}, v{s+1}, v{s}, s33")
        a(f"v_perm_b32 v{d+3}, v{s+3}, v{s+2}, s33")
        a(f"buffer_store_dwordx4 {vr(d,4)}, v14, {sr(S_Y,4)}, {so[j]} offen")
    if stamps:
        a("s_waitcnt vmcnt(0)")
        a("s_memtime s[46:47]")
        a("s_memrealtime s[54:55]")
        a("s_waitcnt lgkmcnt(0)")
        a("s_lshl_b32 s36, s2, 2")
        a("s_add_u32 s36, s36, s3")
        emit_stamp_store(a, 8, 40, 36, 56, 4)
    a.label(f"{name}_end")
    a("s_endpgm")
    kernel_desc(a, name, 212, 212, 100)
    return a
```

```python
from asmlib import *

K_Q, K_K, K_V, K_SHIFT, K_SSMK, K_SSMD, K_BX, K_WG, K_WU, K_WD, K_OUT, K_DBG, K_WS = [8*i for i in range(13)]
MB = 1 << 20
WS_Y, WS_XR, WS_XN, WS_H, WS_STAMP = 0, 4*MB, 8*MB, 12*MB, 32*MB

def emit_stamp_store(a, nst, first_s, wave_index_s, tmp_s, vtmp):
    a(f"s_load_dwordx2 {sr(tmp_s,2)}, s[0:1], {K_WS}")
    a("s_waitcnt lgkmcnt(0)")
    a(f"s_add_u32 s{tmp_s}, s{tmp_s}, {WS_STAMP}")
    a(f"s_addc_u32 s{tmp_s+1}, s{tmp_s+1}, 0")
    a(f"s_mov_b32 s{tmp_s+2}, {MB}")
    a(f"s_mov_b32 s{tmp_s+3}, 0x20000")
    a(f"s_lshl_b32 s{wave_index_s}, s{wave_index_s}, 6")
    a(f"v_mov_b32 v{vtmp}, s{wave_index_s}")
    for i in range(nst):
        a(f"v_mov_b32 v{vtmp+2}, s{first_s+2*i}")
        a(f"v_mov_b32 v{vtmp+3}, s{first_s+2*i+1}")
        a(f"buffer_store_dwordx2 {vr(vtmp+2,2)}, v{vtmp}, {sr(tmp_s,4)}, 0 offen offset:{8*i}")
        a("s_nop 1")
    a("s_waitcnt vmcnt(0)")

def emit_g1(a, name="g1_kernel", stamps=False, do_tr=True, do_x=True, do_dma=True, do_bar=True, do_epi=True,
            vm_pos=None):
    ACC0 = 32
    def acc(fi, rf): return ACC0 + (fi*4 + rf)*4
    def wfrag(fi): return fi*4
    XR0 = 64
    def xfrag(slot, rf): return XR0 + slot*16 + rf*4
    V_L16, V_W0, V_LR0, V_LR1 = 1, 2, 9, 10
    S_X, S_W, S_XOFF, S_WOFF, S_M0B, S_CNT = 4, 8, 24, 25, 26, 27
    SLOT = 28672
    kernel_head(a, name)
    a("s_cmp_ge_u32 s2, 256")
    a(f"s_cbranch_scc1 {name}_end")
    if stamps: a("s_memtime s[40:41]"); a("s_memrealtime s[48:49]")
    a(f"s_load_dwordx4 s[12:15], s[0:1], {K_WG}")
    a(f"s_load_dwordx2 s[16:17], s[0:1], {K_WS}")
    a("v_lshrrev_b32 v11, 6, v0")
    a("v_and_b32 v0, 63, v0")
    a("v_readfirstlane_b32 s3, v11")
    a("s_and_b32 s18, s2, 7")
    a("s_lshr_b32 s19, s2, 3")
    a("s_and_b32 s20, s19, 7")
    a("s_lshr_b32 s21, s19, 3")
    a("s_lshl_b32 s22, s18, 2")
    a("s_add_u32 s21, s21, s22")
    a(f"v_lshlrev_b32 v{V_L16}, 4, v0")
    a("s_lshr_b32 s22, s3, 1")
    a("s_mul_i32 s22, s22, %d" % (32*7168))
    a("s_mul_i32 s23, s21, 224")
    a("s_add_u32 s22, s22, s23")
    a("s_movk_i32 s23, 4682")
    a("s_movk_i32 s28, 7168")
    for i in range(7):
        a(f"v_add_u32 v11, {64*i}, v0")
        a("v_mul_u32_u24 v12, s23, v11")
        a("v_lshrrev_b32 v12, 16, v12")
        a("v_mul_u32_u24 v13, 14, v12")
        a("v_sub_u32 v13, v11, v13")
        a("v_lshrrev_b32 v14, 4, v12")
        a("v_lshlrev_b32 v14, 2, v14")
        a("v_and_b32 v15, 3, v12")
        a("v_add_u32 v14, v14, v15")
        a("v_and_b32 v15, 12, v12")
        a("v_lshl_add_u32 v14, v15, 1, v14")
        a("v_mul_u32_u24 v14, s28, v14")
        a("v_lshl_add_u32 v14, v13, 4, v14")
        a(f"v_add_u32 v14, s22, v14")
        a(f"v_subrev_u32 v{V_W0+i}, {(i%4)*1024}, v14")
    a("v_lshrrev_b32 v11, 2, v0")
    a("s_movk_i32 s23, 224")
    a("v_mul_u32_u24 v11, s23, v11")
    a("v_and_b32 v12, 3, v0")
    a(f"v_lshl_add_u32 v{V_LR0}, v12, 3, v11")
    a(f"v_add_u32 v{V_LR1}, {2*SLOT}, v{V_LR0}")
    a("s_waitcnt lgkmcnt(0)")
    a("s_lshl_b32 s22, s20, 2")
    a("s_add_u32 s22, s22, s3")
    a("s_lshl_b32 s23, s22, 17")
    a(f"s_add_u32 s23, s23, {WS_XN}")
    a(f"s_add_u32 s{S_X}, s16, s23")
    a(f"s_addc_u32 s{S_X+1}, s17, 0")
    a(f"s_mov_b32 s{S_X+2}, 131072")
    a(f"s_mov_b32 s{S_X+3}, 0x20000")
    a("s_and_b32 s23, s3, 1")
    a("s_cmp_eq_u32 s23, 1")
    a(f"s_cselect_b32 s{S_W}, s14, s12")
    a(f"s_cselect_b32 s{S_W+1}, s15, s13")
    a(f"s_mov_b32 s{S_W+2}, {1024*7168}")
    a(f"s_mov_b32 s{S_W+3}, 0x20000")
    a(f"s_mul_i32 s{S_M0B}, s3, 7168")
    a(f"s_mov_b32 s{S_XOFF}, 0")
    a(f"s_mov_b32 s{S_WOFF}, 0")

    def dma_ops(slot):
        ops = []
        for i in range(7):
            pre = []
            if i == 0: pre = [f"s_add_u32 m0, s{S_M0B}, {slot*SLOT}"]
            if i == 4: pre = [f"s_add_u32 m0, s{S_M0B}, {slot*SLOT+4096}"]
            post = [f"s_add_u32 s{S_WOFF}, s{S_WOFF}, {64*7168}"] if i == 6 else []
            ops.append((pre, f"buffer_load_dwordx4 v{V_W0+i}, {sr(S_W,4)}, s{S_WOFF} offen offset:{(i%4)*1024} lds", post))
        return ops
    def x_ops(slot):
        ops = []
        for rf in range(4):
            post = [f"s_add_u32 s{S_XOFF}, s{S_XOFF}, 4096"] if rf == 3 else []
            ops.append(([], f"buffer_load_dwordx4 {ar(xfrag(slot,rf),4)}, v{V_L16}, {sr(S_X,4)}, s{S_XOFF} offen offset:{rf*1024}", post))
        return ops
    def emit_ops(ops):
        for pre, op, post in ops:
            for p in pre: a(p)
            if pre: a("s_nop 0")
            a(op)
            for p in post: a(p)
    def tr_reads(fi, slot, par):
        f, mat = fi // 2, fi % 2
        base, off = (V_LR0, slot*SLOT) if slot < 2 else (V_LR1, (slot-2)*SLOT)
        off += par*14336 + mat*7168 + f*32
        return [f"ds_read_b64_tr_b16 {ar(wfrag(fi)+2*h,2)}, v{base} offset:{off+h*3584}" for h in range(2)]

    emit_ops(dma_ops(0))
    for j in range(1, 4):
        emit_ops(x_ops(2*j-2)); emit_ops(x_ops(2*j-1)); emit_ops(dma_ops(j))
    for r in range(ACC0, 256):
        a(f"v_mov_b32 v{r}, 0")
    a("s_waitcnt vmcnt(45)")
    a("s_barrier")
    for fi in range(14):
        for t in tr_reads(fi, 0, 0): a(t)
    a(f"s_mov_b32 s{S_CNT}, 4")
    a("s_waitcnt lgkmcnt(0)")
    if stamps: a("s_memtime s[42:43]"); a("s_memrealtime s[50:51]"); a("s_waitcnt lgkmcnt(0)")
    a.raw(".p2align 6")
    a.label(f"{name}_loop")
    BARG = 2
    vm = do_x and do_dma
    for ks in range(8):
        mf = [f"v_mfma_f32_16x16x32_bf16 {vr(acc(fi,rf),4)}, {ar(wfrag(fi),4)}, {ar(xfrag(ks,rf),4)}, {vr(acc(fi,rf),4)}"
              for fi in range(14) for rf in range(4)]
        fill = {i: [] for i in range(-1, 56)}
        nslot, npar = ((ks+1)//2) % 4, (ks+1) % 2
        if ks % 2 == 1:
            fill[-1].append("s_waitcnt lgkmcnt(12)")
            bpos = 4*BARG
            fill[bpos].append("s_waitcnt vmcnt(38) lgkmcnt(0)" if vm else "s_waitcnt lgkmcnt(0)")
            if do_bar: fill[bpos].append("s_barrier")
            pos = bpos + 1
            for fi in range(14):
                t = tr_reads(fi, nslot, npar)
                p = max(pos, 4*fi + 4)
                if not do_tr: continue
                if p > 55: fill[55] += t
                else:
                    fill[p].append(t[0]); fill[p+1].append(t[1])
                pos = p + 2
            ops = dma_ops((ks//2) % 4) if do_dma else []
            slots = vm_pos[1] if vm_pos else [19, 23, 27, 35, 39, 47, 51]
        else:
            fill[-1].append("s_waitcnt vmcnt(37) lgkmcnt(12)" if vm else "s_waitcnt lgkmcnt(12)")
            for fi in range(14):
                t = tr_reads(fi, nslot, npar)
                p = 4*fi + 4
                if not do_tr: continue
                if p > 55: fill[55] += t
                else:
                    fill[p].append(t[0]); fill[p+1].append(t[1])
            fill[27].append("s_waitcnt lgkmcnt(12)")
            ops = x_ops((ks+6) % 8) + x_ops((ks+7) % 8) if do_x else []
            slots = vm_pos[0] if vm_pos else [2, 10, 14, 22, 30, 38, 42, 50]
        for s, (pre, op, post) in zip(slots, ops):
            fill[s-1] += pre
            fill[s].append(op)
            fill[s] += post
        for l in interleave(mf, fill): a(l)
    a(f"s_sub_u32 s{S_CNT}, s{S_CNT}, 1")
    a(f"s_cmp_lg_u32 s{S_CNT}, 0")
    a(f"s_cbranch_scc1 {name}_loop")
    if stamps: a("s_memtime s[44:45]"); a("s_memrealtime s[52:53]")

    if do_epi:
        C1 = -2.0*0.7978845608028654*1.4426950408889634
        C2 = C1*0.044715
        S_H = 4
        a(f"s_add_u32 s{S_H}, s16, {WS_H}")
        a(f"s_addc_u32 s{S_H+1}, s17, 0")
        a(f"s_mov_b32 s{S_H+2}, {2048*3584*2}")
        a(f"s_mov_b32 s{S_H+3}, 0x20000")
        a(f"s_mov_b32 s30, 0x{f32bits(C2):08x}")
        a(f"s_mov_b32 s31, 0x{f32bits(C2):08x}")
        a(f"v_mov_b32 v2, 0x{f32bits(C1):08x}")
        a(f"v_mov_b32 v3, 0x{f32bits(C1):08x}")
        a(f"s_mul_i32 s32, s22, {2*112*2048}")
        a("s_mul_i32 s33, s21, 7")
        a("s_lshr_b32 s33, s33, 1")
        a("s_lshl_b32 s33, s33, 11")
        a("s_add_u32 s32, s32, s33")
        a(f"s_add_u32 s33, s32, {112*2048}")
        a("s_add_u32 s34, s32, 4096")
        a("s_add_u32 s35, s33, 4096")
        a("s_nop 4")
        a("s_and_b32 s23, s21, 1")
        a("s_cmp_eq_u32 s23, 1")
        a(f"s_cbranch_scc1 {name}_epi1")
        def gelu_quads(quads):
            st = []
            prs = [(g+2*p, u+2*p, t+2*p, o+p) for (g, u, t, o) in quads for p in range(2)]
            for g, u, t, o in prs: st.append(f"v_pk_mul_f32 {vr(t,2)}, {vr(g,2)}, {vr(g,2)}")
            for g, u, t, o in prs: st.append(f"v_pk_fma_f32 {vr(t,2)}, {vr(t,2)}, s[30:31], v[2:3]")
            for g, u, t, o in prs: st.append(f"v_pk_mul_f32 {vr(t,2)}, {vr(t,2)}, {vr(g,2)}")
            for g, u, t, o in prs:
                st.append(f"v_exp_f32 v{t}, v{t}"); st.append(f"v_exp_f32 v{t+1}, v{t+1}")
            for g, u, t, o in prs: st.append(f"v_pk_mul_f32 {vr(g,2)}, {vr(g,2)}, {vr(u,2)}")
            for g, u, t, o in prs: st.append(f"v_pk_add_f32 {vr(t,2)}, {vr(t,2)}, 1.0 op_sel_hi:[1,0]")
            for g, u, t, o in prs:
                st.append(f"v_rcp_f32 v{t}, v{t}"); st.append(f"v_rcp_f32 v{t+1}, v{t+1}")
            st.append("s_nop 0")
            for g, u, t, o in prs: st.append(f"v_pk_mul_f32 {vr(g,2)}, {vr(g,2)}, {vr(t,2)}")
            for g, u, t, o in prs: st.append(f"v_cvt_pk_bf16_f32 v{o}, v{g}, v{g+1}")
            return st
        for par in range(2):
            if par == 1: a.label(f"{name}_epi1")
            groups = [[0,1],[2,3],[4,5],[6]] if par == 0 else [[0],[1,2],[3,4],[5,6]]
            n = 0
            for gi, fs in enumerate(groups):
                for rf in range(4):
                    ob = 12 + 4*(n % 2); n += 1
                    tb = 20
                    quads = [(acc(2*f,rf), acc(2*f+1,rf), tb+4*i, ob+2*i) for i, f in enumerate(fs)]
                    for l in gelu_quads(quads): a(l)
                    soff = 32 + (rf//2) + 2*(gi//2)
                    off = (gi % 2)*2048 + (rf % 2)*1024
                    if len(fs) == 2:
                        a(f"buffer_store_dwordx4 {vr(ob,4)}, v{V_L16}, {sr(S_H,4)}, s{soff} offen offset:{off}")
                    else:
                        a(f"buffer_store_dwordx2 {vr(ob,2)}, v{V_L16}, {sr(S_H,4)}, s{soff} offen offset:{off + 8*par}")
            if par == 0: a(f"s_branch {name}_fin")
        a.label(f"{name}_fin")
    if stamps:
        a("s_waitcnt vmcnt(0)")
        a("s_memtime s[46:47]")
        a("s_memrealtime s[54:55]")
        a("s_waitcnt lgkmcnt(0)")
        a("s_lshl_b32 s36, s2, 2")
        a("s_add_u32 s36, s36, s3")
        emit_stamp_store(a, 8, 40, 36, 56, 4)
    a.label(f"{name}_end")
    a("s_endpgm")
    kernel_desc(a, name, 256+192, 256)
    return a

if __name__ == "__main__":
    import sys
    kw = eval("dict(%s)" % (sys.argv[2] if len(sys.argv) > 2 else ""))
    a = Asm()
    a.raw("; @launch kernel=g1_kernel grid=(256,1,1) block=(256,1,1) lds=114688")
    a.raw('.amdgcn_target "amdgcn-amd-amdhsa--gfx950"')
    emit_g1(a, **kw)
    open(sys.argv[1], "w").write(a.text())
```

```python
from asmlib import *
from g1 import *

def g2_lds(NS): return NS*4*4224

def emit_g2(a, name="g2_kernel", stamps=False, NS=7, LD=3, do_mfma=True, do_tr=True, do_h=True, do_dma=True, mapmode=0):
    assert 28 % NS == 0 and LD <= NS-2
    KIMG = 4224
    SLOT = 4*KIMG
    L = 4*LD
    ACC0, WF0, RES0 = 32, 64, 16
    def acc(f, rf): return ACC0 + (f*2 + rf)*4
    def wfrag(s, f): return WF0 + (s % 4)*16 + f*4
    def hfrag(s, rf): return (s % (4*NS))*8 + rf*4
    V_L16, V_W0, V_LR0, V_LR1, V_O = 1, 2, 6, 7, 8
    S_H, S_W, S_HOFF, S_WOFF, S_M0B, S_CNT, S_R, S_O = 4, 8, 24, 25, 26, 27, 28, 32
    kernel_head(a, name)
    a("s_cmp_ge_u32 s2, 256")
    a(f"s_cbranch_scc1 {name}_end")
    if stamps: a("s_memtime s[40:41]"); a("s_memrealtime s[48:49]")
    a(f"s_load_dwordx4 s[12:15], s[0:1], {K_WD}")
    a(f"s_load_dwordx2 s[16:17], s[0:1], {K_WS}")
    a("v_lshrrev_b32 v11, 6, v0")
    a("v_and_b32 v0, 63, v0")
    a("v_readfirstlane_b32 s3, v11")
    a("s_and_b32 s18, s2, 7")
    a("s_lshr_b32 s19, s2, 3")
    a("s_and_b32 s20, s19, 3")
    a("s_lshr_b32 s22, s18, 1")
    a("s_lshl_b32 s22, s22, 2")
    a("s_add_u32 s20, s20, s22")
    a("s_lshr_b32 s21, s19, 2")
    a("s_and_b32 s22, s18, 1")
    a("s_lshl_b32 s22, s22, 3")
    a("s_add_u32 s21, s21, s22")
    if mapmode == 1:
        a("s_mov_b32 s20, 0"); a("s_mov_b32 s21, 0")
    if mapmode == 2:
        a("s_and_b32 s20, s20, 3"); a("s_and_b32 s21, s21, 7")
    if mapmode == 3:
        a("s_mov_b32 s20, s18"); a("s_mov_b32 s21, s18")
    if mapmode == 4:
        a("s_and_b32 s20, s19, 1"); a("s_lshl_b32 s22, s18, 1"); a("s_add_u32 s20, s20, s22"); a("s_lshr_b32 s21, s19, 1")
    if mapmode == 5:
        a("s_and_b32 s20, s19, 7"); a("s_and_b32 s22, s18, 1"); a("s_lshl_b32 s22, s22, 3"); a("s_add_u32 s20, s20, s22")
        a("s_lshr_b32 s21, s19, 3"); a("s_lshr_b32 s22, s18, 1"); a("s_lshl_b32 s22, s22, 2"); a("s_add_u32 s21, s21, s22")
    if mapmode == 6:
        a("s_and_b32 s20, s19, 15"); a("s_lshr_b32 s21, s19, 4"); a("s_lshl_b32 s22, s18, 1"); a("s_add_u32 s21, s21, s22")
    a(f"v_lshlrev_b32 v{V_L16}, 4, v0")
    a("v_lshrrev_b32 v11, 4, v0")
    a("v_lshlrev_b32 v11, 3, v11")
    a("v_bfe_u32 v12, v0, 3, 1")
    a("v_add_u32 v11, v11, v12")
    a("v_lshlrev_b32 v11, 11, v11")
    a("v_and_b32 v12, 7, v0")
    a("v_lshl_add_u32 v11, v12, 4, v11")
    a("s_lshl_b32 s22, s3, 16")
    a("s_lshl_b32 s23, s21, 7")
    a("s_add_u32 s22, s22, s23")
    a(f"v_add_u32 v{V_W0}, s22, v11")
    for i in range(1, 4):
        a(f"v_add_u32 v{V_W0+i}, {i*(4096-1056)}, v{V_W0}")
    a("v_bfe_u32 v11, v0, 3, 2")
    a("s_movk_i32 s23, 1056")
    a("v_mul_u32_u24 v11, s23, v11")
    a("v_lshrrev_b32 v12, 5, v0")
    a("v_lshl_add_u32 v11, v12, 8, v11")
    a("v_bfe_u32 v12, v0, 2, 1")
    a("v_lshl_add_u32 v11, v12, 7, v11")
    a("v_and_b32 v12, 3, v0")
    a(f"v_lshl_add_u32 v{V_LR0}, v12, 3, v11")
    HALF = 3*SLOT
    a(f"v_add_u32 v{V_LR1}, {HALF}, v{V_LR0}")
    if NS > 6:
        a(f"v_add_u32 v9, {2*HALF}, v{V_LR0}")
    a("v_and_b32 v11, 15, v0")
    a("v_lshlrev_b32 v11, 11, v11")
    a("v_lshrrev_b32 v12, 4, v0")
    a(f"v_lshl_add_u32 v{V_O}, v12, 3, v11")
    a("s_lshl_b32 s22, s20, 2")
    a("s_add_u32 s22, s22, s3")
    a("s_lshl_b32 s36, s22, 16")
    a("s_lshl_b32 s23, s21, 7")
    a("s_add_u32 s36, s36, s23")
    a("s_add_u32 s37, s36, 32768")
    a("s_waitcnt lgkmcnt(0)")
    a(f"s_mul_i32 s23, s22, {112*2048}")
    a(f"s_add_u32 s23, s23, {WS_H}")
    a(f"s_add_u32 s{S_H}, s16, s23")
    a(f"s_addc_u32 s{S_H+1}, s17, 0")
    a(f"s_mov_b32 s{S_H+2}, {112*2048}")
    a(f"s_mov_b32 s{S_H+3}, 0x20000")
    a(f"s_mov_b32 s{S_W}, s12")
    a(f"s_mov_b32 s{S_W+1}, s13")
    a(f"s_mov_b32 s{S_W+2}, {3584*2048}")
    a(f"s_mov_b32 s{S_W+3}, 0x20000")
    a(f"s_add_u32 s{S_R}, s16, {WS_XR}")
    a(f"s_addc_u32 s{S_R+1}, s17, 0")
    a(f"s_mov_b32 s{S_R+2}, {4*MB}")
    a(f"s_mov_b32 s{S_R+3}, 0x20000")
    a(f"s_mov_b32 s{S_O}, s14")
    a(f"s_mov_b32 s{S_O+1}, s15")
    a(f"s_mov_b32 s{S_O+2}, {4*MB}")
    a(f"s_mov_b32 s{S_O+3}, 0x20000")
    a(f"s_mul_i32 s{S_M0B}, s3, {KIMG}")
    a(f"s_mov_b32 s{S_HOFF}, 0")
    a(f"s_mov_b32 s{S_WOFF}, 0")

    def dma_op(stage, i):
        pre = [f"s_add_u32 m0, s{S_M0B}, {(stage % NS)*SLOT}"] if i == 0 else []
        post = [f"s_add_u32 s{S_WOFF}, s{S_WOFF}, {128*2048}"] if i == 3 else []
        return (pre, f"buffer_load_dwordx4 v{V_W0+i}, {sr(S_W,4)}, s{S_WOFF} offen offset:{i*1056} lds", post)
    def h_ops(s):
        ops = []
        for rf in range(2):
            post = [f"s_add_u32 s{S_HOFF}, s{S_HOFF}, 4096"] if (rf == 1 and s % 2 == 1) else []
            ops.append(([], f"buffer_load_dwordx4 {ar(hfrag(s,rf),4)}, v{V_L16}, {sr(S_H,4)}, s{S_HOFF} offen offset:{(s%2)*2048+rf*1024}", post))
        return ops
    def emit_ops(ops):
        for pre, op, post in ops:
            for p in pre: a(p)
            if pre: a("s_nop 0")
            a(op)
            for p in post: a(p)
    def tr_reads(s):
        slot = (s // 4) % NS
        base = [V_LR0, V_LR1, 9][slot // 3]
        off = (slot % 3)*SLOT + (s % 4)*KIMG
        return [f"ds_read_b64_tr_b16 {vr(wfrag(s,f)+2*h,2)}, v{base} offset:{off+f*32+h*512}" for f in range(4) for h in range(2)]

    def vm_ops(s):
        ops = []
        if s + L >= 0 and do_h: ops += h_ops(s + L)
        st = (s - 2)//4 + 1 + LD
        if st >= 0 and do_dma: ops.append(dma_op(st, (s - 2) % 4))
        return ops
    first = -4*(LD+1) + 2
    npro = 0
    for s in range(first, 0):
        o = vm_ops(s); emit_ops(o); npro += len(o)
    for rf in range(2):
        for f in range(4):
            a(f"buffer_load_dwordx2 {vr(RES0+(f*2+rf)*2,2)}, v{V_O}, {sr(S_R,4)}, s{36+rf} offen offset:{f*32}")
    for r in range(ACC0, ACC0+32):
        a(f"v_mov_b32 v{r}, 0")
    after = sum(len(vm_ops(s)) for s in range(first+4, 0)) + 8
    a(f"s_waitcnt vmcnt({min(after,63)})")
    a("s_barrier")
    for s in range(2):
        for t in tr_reads(s): a(t)
    a(f"s_mov_b32 s{S_CNT}, {28//NS}")
    if stamps: a("s_memtime s[42:43]"); a("s_memrealtime s[50:51]"); a("s_waitcnt lgkmcnt(0)")
    a.raw(".p2align 6")
    a.label(f"{name}_loop")
    vm = do_h and do_dma
    for s in range(4*NS):
        mf = [f"v_mfma_f32_16x16x32_bf16 {vr(acc(f,rf),4)}, {vr(wfrag(s,f),4)}, {ar(hfrag(s,rf),4)}, {vr(acc(f,rf),4)}"
              for f in range(4) for rf in range(2)]
        if not do_mfma: mf = ["s_nop 0"]*8
        fill = {i: [] for i in range(-1, 8)}
        n = 12*(LD-1) if s % 4 == 2 else 3*L - 2
        fill[-1].append(f"s_waitcnt vmcnt({n}) lgkmcnt(8)" if vm else "s_waitcnt lgkmcnt(8)")
        if s % 4 == 2: fill[-1].append("s_barrier")
        if do_tr:
            for i, t in enumerate(tr_reads(s+2)): fill[i].append(t)
        for p, (pre, op, post) in zip([1, 3, 5], vm_ops(s)):
            fill[p-1] += pre
            fill[p].append(op)
            fill[p+1] += post
        for l in interleave(mf, fill): a(l)
    a(f"s_sub_u32 s{S_CNT}, s{S_CNT}, 1")
    a(f"s_cmp_lg_u32 s{S_CNT}, 0")
    a(f"s_cbranch_scc1 {name}_loop")
    if stamps: a("s_memtime s[44:45]"); a("s_memrealtime s[52:53]")
    a("s_waitcnt lgkmcnt(0)")
    a("s_nop 7")
    a("s_mov_b32 s38, 0xffff0000")
    for rf in range(2):
        for f in range(4):
            c, r, t = acc(f, rf), RES0 + (f*2+rf)*2, 64 + (f*2+rf)*4
            a(f"v_cvt_pk_bf16_f32 v{c}, v{c}, v{c+1}")
            a(f"v_cvt_pk_bf16_f32 v{c+2}, v{c+2}, v{c+3}")
            a(f"v_lshlrev_b32 v{t}, 16, v{r}")
            a(f"v_and_b32 v{t+1}, s38, v{r}")
            a(f"v_lshlrev_b32 v{t+2}, 16, v{r+1}")
            a(f"v_and_b32 v{t+3}, s38, v{r+1}")
            a(f"v_and_b32 v{c+1}, s38, v{c}")
            a(f"v_lshlrev_b32 v{c}, 16, v{c}")
            a(f"v_and_b32 v{c+3}, s38, v{c+2}")
            a(f"v_lshlrev_b32 v{c+2}, 16, v{c+2}")
            a(f"v_pk_add_f32 {vr(c,2)}, {vr(c,2)}, {vr(t,2)}")
            a(f"v_pk_add_f32 {vr(c+2,2)}, {vr(c+2,2)}, {vr(t+2,2)}")
            a(f"v_cvt_pk_bf16_f32 v{t}, v{c}, v{c+1}")
            a(f"v_cvt_pk_bf16_f32 v{t+1}, v{c+2}, v{c+3}")
            a(f"buffer_store_dwordx2 {vr(t,2)}, v{V_O}, {sr(S_O,4)}, s{36+rf} offen offset:{f*32}")
    if stamps:
        a("s_waitcnt vmcnt(0)")
        a("s_memtime s[46:47]")
        a("s_memrealtime s[54:55]")
        a("s_waitcnt lgkmcnt(0)")
        a("s_lshl_b32 s36, s2, 2")
        a("s_add_u32 s36, s36, s3")
        emit_stamp_store(a, 8, 40, 36, 56, 4)
    a.label(f"{name}_end")
    a("s_endpgm")
    kernel_desc(a, name, 128 + 32*NS, 128)
    return a
```

```python
from asmlib import *
from g1 import *

LN_LDS = 1024

def emit_ln(a, name, src_karg, stamps=False):
    S_X, S_Y, S_R, S_N = 4, 8, 12, 20
    X, Y, T, P = 16, 32, 48, 64
    kernel_head(a, name)
    a("s_cmp_ge_u32 s2, 256")
    a(f"s_cbranch_scc1 {name}_end")
    if stamps: a("s_memtime s[40:41]"); a("s_memrealtime s[48:49]")
    a(f"s_load_dwordx2 {sr(S_X,2)}, s[0:1], {src_karg}")
    a(f"s_load_dwordx2 s[16:17], s[0:1], {K_WS}")
    a("v_and_b32 v1, 7, v0")
    a("v_bfe_u32 v2, v0, 3, 3")
    a("v_lshrrev_b32 v3, 6, v0")
    a("s_lshl_b32 s3, s2, 3")
    a("v_add_u32 v4, s3, v1")
    a("v_lshl_add_u32 v5, v3, 4, v2")
    a("v_lshlrev_b32 v6, 11, v4")
    a("v_lshl_add_u32 v6, v5, 4, v6")
    a("v_lshlrev_b32 v7, 15, v5")
    a("v_lshl_add_u32 v7, v4, 3, v7")
    a("s_mov_b32 s24, 16384")
    a("s_mov_b32 s25, 262144")
    a("s_mov_b32 s26, 278528")
    a("s_mov_b32 s27, 0xffff0000")
    a("s_movk_i32 s28, 8192")
    a("s_waitcnt lgkmcnt(0)")
    a(f"s_mov_b32 s{S_X+2}, {4*MB}")
    a(f"s_mov_b32 s{S_X+3}, 0x20000")
    a(f"s_add_u32 s{S_Y}, s16, {WS_Y}")
    a(f"s_addc_u32 s{S_Y+1}, s17, 0")
    a(f"s_mov_b32 s{S_Y+2}, {4*MB}")
    a(f"s_mov_b32 s{S_Y+3}, 0x20000")
    a(f"buffer_load_dwordx4 {vr(P,4)}, v6, {sr(S_X,4)}, 0 offen")
    a(f"buffer_load_dwordx4 {vr(P+4,4)}, v6, {sr(S_X,4)}, 0 offen offset:128")
    for i, so in enumerate(["0", "s24", "s25", "s26"]):
        a(f"buffer_load_dwordx2 {vr(T+8+2*i,2)}, v7, {sr(S_Y,4)}, {so} offen")
    a(f"s_add_u32 s{S_R}, s16, {WS_XR}")
    a(f"s_addc_u32 s{S_R+1}, s17, 0")
    a(f"s_mov_b32 s{S_R+2}, {4*MB}")
    a(f"s_mov_b32 s{S_R+3}, 0x20000")
    a(f"s_add_u32 s{S_N}, s16, {WS_XN}")
    a(f"s_addc_u32 s{S_N+1}, s17, 0")
    a(f"s_mov_b32 s{S_N+2}, {4*MB}")
    a(f"s_mov_b32 s{S_N+3}, 0x20000")
    a("v_lshrrev_b32 v8, 6, v4")
    a("v_lshlrev_b32 v8, 17, v8")
    a("v_lshrrev_b32 v9, 2, v5")
    a("v_lshl_add_u32 v8, v9, 12, v8")
    a("v_bfe_u32 v9, v4, 4, 2")
    a("v_lshl_add_u32 v8, v9, 10, v8")
    a("v_and_b32 v9, 3, v2")
    a("v_lshl_add_u32 v8, v9, 8, v8")
    a("v_and_b32 v9, 15, v4")
    a("v_lshl_add_u32 v8, v9, 4, v8")
    a("v_lshlrev_b32 v10, 6, v1")
    a("v_lshl_add_u32 v9, v3, 3, v10")

    def unpack(dst, src, n):
        for j in range(n):
            a(f"v_lshlrev_b32 v{dst+2*j}, 16, v{src+j}")
            a(f"v_and_b32 v{dst+2*j+1}, s27, v{src+j}")
    def lane_reduce(v, t):
        a("s_nop 1")
        a(f"v_add_f32_dpp v{v}, v{v}, v{v} row_ror:8 row_mask:0xf bank_mask:0xf")
        for op in ("v_permlane16_swap_b32", "v_permlane32_swap_b32"):
            a(f"v_mov_b32 v{t}, v{v}")
            a("s_nop 1")
            a(f"{op} v{v}, v{t}")
            a("s_nop 1")
            a(f"v_add_f32 v{v}, v{v}, v{t}")
    def rnd1(v):
        a(f"v_cvt_pk_bf16_f32 v{v}, v{v}, v{v}")
        a(f"v_and_b32 v{v}, s27, v{v}")
    def stats(lds_off):
        a(f"v_pk_add_f32 v[12:13], {vr(X,2)}, {vr(X+2,2)}")
        a(f"v_pk_add_f32 v[14:15], {vr(X+4,2)}, {vr(X+6,2)}")
        for j in range(4, 8, 2):
            a(f"v_pk_add_f32 v[12:13], v[12:13], {vr(X+2*j,2)}")
            a(f"v_pk_add_f32 v[14:15], v[14:15], {vr(X+2*j+2,2)}")
        a("v_pk_add_f32 v[12:13], v[12:13], v[14:15]")
        a("v_add_f32 v12, v12, v13")
        lane_reduce(12, 13)
        a(f"v_mul_f32 v12, 0x{f32bits(-1.0/128):08x}, v12")
        a("v_mov_b32 v13, v12")
        for j in range(4):
            a(f"v_pk_add_f32 {vr(T+2*j,2)}, {vr(X+2*j,2)}, v[12:13]")
        a(f"v_pk_mul_f32 v[14:15], {vr(T,2)}, {vr(T,2)}")
        for j in range(1, 4):
            a(f"v_pk_fma_f32 v[14:15], {vr(T+2*j,2)}, {vr(T+2*j,2)}, v[14:15]")
        for j in range(4):
            a(f"v_pk_add_f32 {vr(T+2*j,2)}, {vr(X+8+2*j,2)}, v[12:13]")
        for j in range(4):
            a(f"v_pk_fma_f32 v[14:15], {vr(T+2*j,2)}, {vr(T+2*j,2)}, v[14:15]")
        a("v_add_f32 v13, v14, v15")
        lane_reduce(13, 14)
        a(f"ds_write_b64 v9, v[12:13] offset:{lds_off}")
        a("s_waitcnt lgkmcnt(0)")
        a("s_barrier")
        for j in range(4):
            a(f"ds_read_b128 {vr(72+4*j,4)}, v10 offset:{lds_off+16*j}")
        a("s_waitcnt lgkmcnt(0)")
        a("v_pk_add_f32 v[12:13], v[72:73], v[74:75]")
        for j in range(2, 8):
            a(f"v_pk_add_f32 v[12:13], v[12:13], {vr(72+2*j,2)}")
        a("v_mul_f32 v12, 0.125, v12" if False else f"v_mul_f32 v12, 0x{f32bits(0.125):08x}, v12")
        a("v_sub_f32 v14, v72, v12")
        a("v_mul_f32 v15, v14, v14")
        for j in range(1, 8):
            a(f"v_sub_f32 v14, v{72+2*j}, v12")
            a("v_fmac_f32 v15, v14, v14")
        a(f"v_mul_f32 v15, 0x{f32bits(128.0):08x}, v15")
        a("v_add_f32 v14, v13, v15")
        a(f"v_mul_f32 v14, 0x{f32bits(1.0/1024):08x}, v14")
        rnd1(14)
        a(f"v_add_f32 v14, 0x{f32bits(1e-5):08x}, v14")
        rnd1(14)
        a("v_sqrt_f32 v14, v14")
        rnd1(12)
        rnd1(14)
        a("v_rcp_f32 v14, v14")
        a("v_mov_b32 v13, v12")
        a("v_mov_b32 v15, v14")
    def rnd_pairs(v, p, n):
        for j in range(n): a(f"v_cvt_pk_bf16_f32 v{p+j}, v{v+2*j}, v{v+2*j+1}")
        unpack(v, p, n)

    a("s_waitcnt vmcnt(4)")
    unpack(X, P, 8)
    a("s_waitcnt vmcnt(0)")
    unpack(Y, T+8, 8)
    stats(0)
    for j in range(8): a(f"v_pk_add_f32 {vr(T+2*j,2)}, {vr(X+2*j,2)}, v[12:13]")
    rnd_pairs(T, P, 8)
    for j in range(8): a(f"v_pk_mul_f32 {vr(T+2*j,2)}, {vr(T+2*j,2)}, v[14:15]")
    rnd_pairs(T, P, 8)
    for j in range(8): a(f"v_pk_mul_f32 {vr(T+2*j,2)}, {vr(T+2*j,2)}, {vr(Y+2*j,2)}")
    rnd_pairs(T, P, 8)
    for j in range(8): a(f"v_pk_add_f32 {vr(X+2*j,2)}, {vr(X+2*j,2)}, {vr(T+2*j,2)}")
    rnd_pairs(X, Y, 8)
    a(f"buffer_store_dwordx4 {vr(Y,4)}, v6, {sr(S_R,4)}, 0 offen")
    a(f"buffer_store_dwordx4 {vr(Y+4,4)}, v6, {sr(S_R,4)}, 0 offen offset:128")
    stats(512)
    for j in range(8): a(f"v_pk_add_f32 {vr(T+2*j,2)}, {vr(X+2*j,2)}, v[12:13]")
    rnd_pairs(T, P, 8)
    for j in range(8): a(f"v_pk_mul_f32 {vr(T+2*j,2)}, {vr(T+2*j,2)}, v[14:15]")
    for j in range(8): a(f"v_cvt_pk_bf16_f32 v{P+j}, v{T+2*j}, v{T+2*j+1}")
    a(f"buffer_store_dwordx4 {vr(P,4)}, v8, {sr(S_N,4)}, 0 offen")
    a(f"buffer_store_dwordx4 {vr(P+4,4)}, v8, {sr(S_N,4)}, s28 offen")
    if stamps:
        a("s_waitcnt vmcnt(0)")
        a("s_memtime s[46:47]")
        a("s_memrealtime s[54:55]")
        a("s_waitcnt lgkmcnt(0)")
    a.label(f"{name}_end")
    a("s_endpgm")
    kernel_desc(a, name, 88, 88, 64)
    return a
```

```python
import sys
from asmlib import *
from g1 import *
from g2 import *
from ln import *
from conv import *

NAME = "interleave_layers__ssm_conv_h3__glu_gated_geglu__prompt"

def generate(g2kw=dict(NS=4, LD=2), stamps=()):
    a = Asm()
    a.raw("; H3 long-conv + GEGLU MLP stack, two layers. Launch list:")
    L = [("conv_kernel", 256, CONV_LDS), ("ln1_kernel", 512, LN_LDS), ("g1_kernel", 256, 114688),
         ("g2_kernel", 256, g2_lds(g2kw["NS"])), ("ln2_kernel", 512, LN_LDS), ("g1_kernel", 256, 114688),
         ("g2_kernel", 256, g2_lds(g2kw["NS"]))]
    for k, b, lds in L:
        a.raw(f"; @launch kernel={k} grid=(256,1,1) block=({b},1,1) lds={lds}")
    a.raw('.amdgcn_target "amdgcn-amd-amdhsa--gfx950"')
    emit_conv(a, "conv_kernel", stamps="conv" in stamps)
    emit_ln(a, "ln1_kernel", K_Q)
    emit_ln(a, "ln2_kernel", K_OUT)
    emit_g1(a, "g1_kernel", stamps="g1" in stamps)
    emit_g2(a, "g2_kernel", stamps="g2" in stamps, **g2kw)
    return a.text()

if __name__ == "__main__":
    out = sys.argv[1] if len(sys.argv) > 1 else f"cdna_kernels/{NAME}.s"
    open(out, "w").write(generate())
```
